```python
import torch

def _softmax(x, axis=-1):
    return torch.softmax(x, dim=axis)
def _gelu(x):
    return torch.nn.functional.gelu(x, approximate="tanh")
def _silu(x):
    return torch.nn.functional.silu(x)
def _sigmoid(x):
    return torch.sigmoid(x)
def _layernorm(x, axis=-1, eps=1e-5):
    m = x.mean(dim=axis, keepdim=True)
    v = x.var(dim=axis, keepdim=True, unbiased=False)
    return (x - m) / torch.sqrt(v + eps)
def _scatter_add(tgt, idx, src, axis=0):
    return tgt.clone().index_add_(axis, idx, src)
def _segment_sum(src, seg, n):
    out = torch.zeros((n,) + src.shape[1:], dtype=src.dtype)
    return out.index_add_(0, seg, src)
def _pad(x, pw):
    flat = tuple(v for pair in reversed(pw) for v in pair)
    return torch.nn.functional.pad(x, flat)

kernel_name = 'parallel_sum__ssm_conv_s4__glu_gated_geglu__prompt'

def setup_inputs():

    _w = (lambda a: (lambda t: t.to(torch.bfloat16) if t.is_floating_point() else t)(torch.as_tensor(a)))
    def _A_setup():
        B, L, D, N = 1, 2048, 512, 128
        A_re = -(lambda _x: torch.exp(torch.as_tensor(_x)))((lambda *s: torch.randn(*s, dtype=torch.bfloat16) * 6.4)(D, N))
        A_im = torch.pi * (lambda *s: torch.randn(*s, dtype=torch.bfloat16) * 0.05)(D, N)
        B_re = (lambda *s: torch.randn(*s, dtype=torch.bfloat16) * 0.1)(D, N)
        B_im = (lambda *s: torch.randn(*s, dtype=torch.bfloat16) * 0.1)(D, N)
        C_re = (lambda *s: torch.randn(*s, dtype=torch.bfloat16) * 0.1)(D, N)
        C_im = (lambda *s: torch.randn(*s, dtype=torch.bfloat16) * 0.1)(D, N)
        log_dt = (lambda *s: torch.randn(*s, dtype=torch.bfloat16) * 0.05)(D) * 0.5 - 4.0
        Dskip = (lambda *s: torch.randn(*s, dtype=torch.bfloat16) * 0.05)(D)
        return {
            "u": _w((lambda *s: torch.randn(*s, dtype=torch.bfloat16) * 0.05)(B, L, D)),
            "A_re": _w(A_re),
            "A_im": _w(A_im),
            "B_re": _w(B_re),
            "B_im": _w(B_im),
            "C_re": _w(C_re),
            "C_im": _w(C_im),
            "log_dt": _w(log_dt),
            "Dskip": _w(Dskip),
        }
    _A_in = _A_setup()

    def _B_setup():
        B, S, Dm, Df = 1, 2048, 512, 1792
        return {
            "x": _w((lambda *s: torch.randn(*s, dtype=torch.bfloat16) * 0.05)(B, S, Dm)),
            "w_gate": _w((lambda *s: torch.randn(*s, dtype=torch.bfloat16) * 0.4)(Dm, Df) * (Dm ** -0.5)),
            "w_up": _w((lambda *s: torch.randn(*s, dtype=torch.bfloat16) * 0.4)(Dm, Df) * (Dm ** -0.5)),
            "w_down": _w((lambda *s: torch.randn(*s, dtype=torch.bfloat16) * 0.4)(Df, Dm) * (Df ** -0.5)),
        }
    _B_in = _B_setup()

    return {
        "A_u": _A_in["u"],
        "A_A_re": _A_in["A_re"],
        "A_A_im": _A_in["A_im"],
        "A_B_re": _A_in["B_re"],
        "A_B_im": _A_in["B_im"],
        "A_C_re": _A_in["C_re"],
        "A_C_im": _A_in["C_im"],
        "A_log_dt": _A_in["log_dt"],
        "A_Dskip": _A_in["Dskip"],
        "B_x": _B_in["x"],
        "B_w_gate": _B_in["w_gate"],
        "B_w_up": _B_in["w_up"],
        "B_w_down": _B_in["w_down"],
    }

def reference(A_u, A_A_re, A_A_im, A_B_re, A_B_im, A_C_re, A_C_im, A_log_dt, A_Dskip, B_x, B_w_gate, B_w_up, B_w_down):
    def _A_ref(u, A_re, A_im, B_re, B_im, C_re, C_im, log_dt, Dskip):
        Bsz, L, D = u.shape
        dt = torch.exp(log_dt)[:, None]
        A = A_re + 1j * A_im
        Bc = B_re + 1j * B_im
        Cc = C_re + 1j * C_im
        logdA = dt * A
        dB = dt * Bc
        l = (lambda x, dt: x.to(dt))(torch.arange(L), A_re.dtype)
        P = torch.exp(logdA[:, :, None] * l[None, None, :])
        K = torch.einsum("dn,dnl,dn->dl", Cc, P, dB).real
        L2 = 2 * L
        Kp = _pad(K, ((0, 0), (0, L)))
        up = (lambda x, *d: x.permute(*d))(u, 0, 2, 1)
        up = _pad(up, ((0, 0), (0, 0), (0, L)))
        Kf = (lambda x, axes=(-2,-1): torch.fft.rfft2(x.float(), dim=axes))(Kp[:, None, :], axes=(-2, -1))
        Uf = (lambda x, axes=(-2,-1): torch.fft.rfft2(x.float(), dim=axes))(up[:, :, None, :], axes=(-2, -1))
        Yf = Uf * Kf[None, :, :, :]
        y = (lambda x, s, axes=(-2,-1): torch.fft.irfft2(x, s=s, dim=axes).to(torch.bfloat16))(Yf, (1, L2), axes=(-2, -1))[:, :, 0, :L]
        y = (lambda x, *d: x.permute(*d))(y, 0, 2, 1) + u * Dskip[None, None, :]
        return y

    def _B_ref(x, w_gate, w_up, w_down):
        g = torch.einsum("bsd,df->bsf", x, w_gate)
        u = torch.einsum("bsd,df->bsf", x, w_up)
        h = _gelu(g) * u
        return torch.einsum("bsf,fd->bsd", h, w_down)

    x = A_u
    xn = _layernorm(x, axis=-1)
    return x + _A_ref(xn, A_A_re, A_A_im, A_B_re, A_B_im, A_C_re, A_C_im, A_log_dt, A_Dskip) + _B_ref(xn, B_w_gate, B_w_up, B_w_down)
```

```python
import re

def regs_of(tok):
    tok = tok.strip()
    neg = tok.lstrip('-')
    if neg.startswith('abs(') or neg.startswith('|'):
        neg = neg.replace('abs(', '').replace(')', '').replace('|', '')
    m = re.fullmatch(r'([vas])(\d+)', neg)
    if m: return [(m.group(1), int(m.group(2)))]
    m = re.fullmatch(r'([vas])\[(\d+):(\d+)\]', neg)
    if m: return [(m.group(1), i) for i in range(int(m.group(2)), int(m.group(3)) + 1)]
    if neg == 'vcc': return [('s', 'vcc')]
    if neg == 'exec': return [('s', 'exec')]
    if neg == 'm0': return [('s', 'm0')]
    return []

TRANS = ('v_exp_f32', 'v_log_f32', 'v_rcp_f32', 'v_rsq_f32', 'v_sqrt_f32', 'v_sin_f32', 'v_cos_f32')
NO_DST_S = ('s_cmp', 's_waitcnt', 's_nop', 's_barrier', 's_cbranch', 's_branch', 's_setprio', 's_sleep', 's_endpgm', 's_bitcmp')

class Ins:
    __slots__ = ('text', 'op', 'dst', 'src', 'kind', 'tag', 'passes', 'mods', 'csrc', 'ab', 'sdata')
    def __init__(self, text, tag=None):
        self.text = text; self.tag = tag
        t = text.split(';')[0].strip()
        parts = t.split(None, 1)
        self.op = op = parts[0]
        rest = parts[1] if len(parts) > 1 else ''
        ops = []; depth = 0; cur = ''
        for ch in rest:
            if ch == '[': depth += 1
            if ch == ']': depth -= 1
            if ch == ',' and depth == 0:
                ops.append(cur.strip()); cur = ''
            else: cur += ch
        if cur.strip(): ops.append(cur.strip())
        mods = ''
        if ops:
            sp = ops[-1].split(None, 1)
            if len(sp) > 1:
                ops[-1] = sp[0]; mods = sp[1]
        self.mods = mods
        R = [regs_of(o) for o in ops]
        dst = []; src = []; self.passes = 0; self.csrc = []; self.ab = []; self.sdata = []
        flat = lambda xs: [r for x in xs for r in x]
        if op.startswith('v_mfma'):
            self.kind = 'mfma'
            self.passes = 8 if '32x32' in op else 4
            dst = R[0]; self.ab = R[1] + R[2]; self.csrc = R[3]; src = self.ab + self.csrc
        elif op.startswith('v_'):
            self.kind = 'trans' if op.replace('_e32', '').replace('_e64', '') in TRANS else 'valu'
            if op.startswith('v_permlane') and 'swap' in op:
                dst = R[0] + R[1]; src = R[0] + R[1]
            elif op.startswith(('v_add_co', 'v_sub_co', 'v_addc_co', 'v_subb_co')):
                dst = R[0] + R[1]; src = flat(R[2:])
            else:
                dst = R[0]; src = flat(R[1:])
                if op.startswith(('v_fmac', 'v_dot2c', 'v_pk_fmac')) or 'dpp' in op or 'sdwa' in op: src = src + R[0]
                if op.startswith('v_writelane'): src = src + R[0]
        elif op.startswith('ds_'):
            self.kind = 'ds'
            if op.startswith('ds_read') or op.startswith('ds_bpermute') or op.startswith('ds_swizzle'):
                dst = R[0]; src = flat(R[1:])
            else:
                src = flat(R)
        elif op.startswith(('global_', 'buffer_')):
            self.kind = 'vmem'
            if op in ('buffer_wbl2', 'buffer_inv'):
                pass
            elif ' lds' in (' ' + mods) or op.startswith('global_load_lds'):
                src = flat(R) + [('s', 'm0')]
            elif 'load' in op:
                dst = R[0]; src = flat(R[1:])
                if 'd16' in op: src = src + R[0]
            elif 'atomic' in op:
                if 'sc0' in mods.split():
                    dst = R[0]; src = flat(R[1:])
                else:
                    src = flat(R)
            else:
                src = flat(R)
                self.sdata = R[1] if op.startswith('global_') else R[0]
        elif op.startswith('s_load') or op.startswith('s_memtime') or op.startswith('s_memrealtime'):
            self.kind = 'smem'; dst = R[0]; src = flat(R[1:])
        elif op.startswith('s_'):
            self.kind = 'salu'
            if op.startswith(NO_DST_S):
                src = flat(R)
            else:
                dst = R[0]; src = flat(R[1:])
                if 'saveexec' in op: dst = dst + [('s', 'exec')]; src = src + [('s', 'exec')]
                if op.startswith(('s_addk', 's_mulk')): src = src + R[0]
        else:
            raise ValueError('unknown op ' + text)
        self.dst = dst; self.src = src

    def states(self):
        if self.op == 's_nop':
            return int(self.text.split()[1]) + 1
        return 1

class Emitter:
    def __init__(self):
        self.items = []
    def __call__(self, text, tag=None):
        for line in text.split('\n'):
            line = line.strip()
            if not line or line.startswith(';'): continue
            self.items.append(('i', Ins(line, tag)))
    def ins(self, lst):
        for x in lst:
            if isinstance(x, tuple) and x[0] in ('waitvm', 'waitlgkm0', 'label', 'raw', 'comment', 'drain'):
                self.items.append(x)
            elif isinstance(x, tuple):
                self(x[0], x[1])
            else:
                self(x)
    def label(self, name): self.items.append(('label', name))
    def comment(self, c): self.items.append(('comment', c))
    def raw(self, t): self.items.append(('raw', t))
    def waitvm(self, tag): self.items.append(('waitvm', tag))
    def waitlgkm0(self): self.items.append(('waitlgkm0',))
    def drain(self, what): self.items.append(('drain', what))

    def finalize(self):
        out = []
        vm = []
        lg = []
        hist = []
        stats = {'nops': 0, 'waits': 0, 'n': 0, 'bytes': 0}
        def emit_ins(i):
            out.append('  ' + i.text); hist.append(i)
            if len(hist) > 40: del hist[0]
            stats['n'] += 1
        def emit_wait(vmn=None, lgn=None):
            nonlocal vm, lg
            parts = []
            if vmn is not None:
                assert vmn <= 63, vmn
                parts.append(f'vmcnt({vmn})'); vm = vm[len(vm) - vmn:] if vmn > 0 else []
            if lgn is not None:
                assert lgn <= 15, lgn
                parts.append(f'lgkmcnt({lgn})'); lg = lg[len(lg) - lgn:] if lgn > 0 else []
            if parts:
                emit_ins(Ins('s_waitcnt ' + ' '.join(parts))); stats['waits'] += 1
        for it in self.items:
            k = it[0]
            if k == 'label':
                out.append(it[1] + ':')
                continue
            if k == 'comment':
                out.append('  ; ' + it[1]); continue
            if k == 'raw':
                out.append(it[1]); continue
            if k == 'waitvm':
                idx = [j for j, (d, t) in enumerate(vm) if t == it[1]]
                if idx: emit_wait(vmn=len(vm) - 1 - idx[-1])
                continue
            if k == 'waitlgkm0':
                if lg: emit_wait(lgn=0)
                continue
            if k == 'drain':
                emit_wait(vmn=0 if 'vm' in it[1] and True else None, lgn=0 if 'lg' in it[1] else None)
                continue
            i = it[1]
            touched = set(i.src) | set(i.dst)
            need_vm = None
            for j, (d, t) in enumerate(vm):
                if d & touched: need_vm = len(vm) - 1 - j
            need_lg = None
            for j, (d, sm) in enumerate(lg):
                if d & touched:
                    if sm or any(s for _, s in lg): need_lg = 0
                    else:
                        n = len(lg) - 1 - j
                        need_lg = n if need_lg is None else min(need_lg, n)
            if i.op == 's_waitcnt':
                m = re.search(r'vmcnt\((\d+)\)', i.text)
                if m:
                    n = int(m.group(1)); vm = vm[max(0, len(vm) - n):] if n > 0 else []
                m = re.search(r'lgkmcnt\((\d+)\)', i.text)
                if m:
                    n = int(m.group(1)); lg = lg[max(0, len(lg) - n):] if n > 0 else []
            if need_lg is not None and need_lg > 15: need_lg = 15
            if need_vm is not None or need_lg is not None:
                emit_wait(need_vm, need_lg)
            if i.kind == 'vmem' and len(vm) >= 63: emit_wait(vmn=62)
            need = 0
            dist = 0
            for p in reversed(hist):
                req = self.hazard(p, i)
                if req > dist: need = max(need, req - dist)
                dist += p.states()
                if dist >= 20: break
            while need > 0:
                n = min(need, 16)
                emit_ins(Ins(f's_nop {n-1}')); stats['nops'] += n
                need -= n
            emit_ins(i)
            if i.kind == 'vmem':
                vm.append((set(i.dst), i.tag))
            elif i.kind == 'ds':
                lg.append((set(i.dst), False))
                if len(lg) > 64: pass
            elif i.kind == 'smem':
                lg.append((set(i.dst), True))
        self.stats = stats
        return '\n'.join(out) + '\n'

    @staticmethod
    def hazard(p, c):
        req = 0
        pd = set(p.dst); cs = set(c.src); cd = set(c.dst)
        pv = p.kind in ('valu', 'trans')
        cv = c.kind in ('valu', 'trans')
        vreg = lambda S: {r for r in S if r[0] in ('v', 'a')}
        sreg = lambda S: {r for r in S if r[0] == 's'}
        if pv and c.kind == 'mfma' and vreg(pd) & cs: req = max(req, 2)
        if pv and c.kind == 'mfma' and ('s', 'exec') in pd: req = max(req, 4)
        if p.kind == 'mfma':
            big = p.passes == 8
            if c.kind == 'mfma':
                if pd & set(c.ab): req = max(req, 12 if big else 8)
                ov = pd & set(c.csrc)
                if ov and not (p.dst == c.csrc and p.passes == c.passes): req = max(req, 10 if big else 6)
                ovd = pd & cd
                if ovd and not ov: req = max(req, 10 if big else 6)
            elif cv or c.kind in ('vmem', 'ds'):
                if pd & (cs | cd): req = max(req, 12 if big else 8)
            if cv and set(p.csrc) & cd: req = max(req, 7 if big else 3)
        if pv and sreg(pd):
            if c.kind == 'vmem' and sreg(pd) & cs: req = max(req, 5)
            if cv and sreg(pd) & cs: req = max(req, 4 if c.op.startswith(('v_readlane', 'v_writelane')) else 2)
            if c.kind in ('salu', 'smem') and sreg(pd) & cs: req = max(req, 4)
        if pv and c.op.startswith(('v_readfirstlane', 'v_readlane')) and vreg(pd) & cs: req = max(req, 1)
        if p.kind == 'trans' and cv and vreg(pd) & cs: req = max(req, 1)
        if pv and ('dpp' in c.op or 'quad_perm' in c.mods or 'row_' in c.mods) and vreg(pd) & cs: req = max(req, 2)
        if pv and c.op.startswith('v_permlane') and vreg(pd) & cs: req = max(req, 2)
        if p.kind == 'salu' and ('s', 'm0') in pd and ('s', 'm0') in cs and c.kind == 'vmem': req = max(req, 1)
        if p.kind == 'vmem' and p.sdata and ('x4' in p.op or 'x3' in p.op):
            if set(p.sdata) & cd: req = max(req, 2)
        if pv and 'sdwa' in p.op and 'dst_sel:DWORD' not in p.text and cv and vreg(pd) & (cs | cd): req = max(req, 1)
        if pv and 'op_sel' in p.text and p.op.startswith('v_cvt') and cv and vreg(pd) & cs: req = max(req, 1)
        return req
```

```python
import sys
from emit import Emitter

KN = "parallel_sum__ssm_conv_s4__glu_gated_geglu__prompt_kernel"

WS_E      = 0x0
WS_LNF    = 0x1000
WS_HF     = 0x2000
WS_YF     = 0x3000
WS_XNF    = 0x100000
WS_XNT    = 0x400000
WS_HFRAG  = 0x800000
WS_YA     = 0x1000000
WS_DBG    = 0x2000000

KC_STRIDE = 4160
KC_CH     = 4 * KC_STRIDE
L_KC      = 0
L_U       = 33280
U_CH      = 4608
L_T       = 42496
T_ROW     = 544
T_CH      = 63 * T_ROW
L_LNS     = 0
LNS_ROW   = 1088
L_RING    = 65536
L_WD      = 49152
LDS_BYTES = 163840

S_W = 's3'; S_X = 's4'; S_IDX = 's5'; S_P = 's6'
SRD_WS = 's[8:11]'; SRD_WG = 's[12:15]'; SRD_WU = 's[48:51]'; SRD_WD = 's[52:55]'; SRD_X = 's[56:59]'; SRD_OUT = 's[60:63]'
P_X = 's[16:17]'; P_ARE = 's[18:19]'; P_AIM = 's[20:21]'; P_BRE = 's[22:23]'; P_BIM = 's[24:25]'; P_CRE = 's[26:27]'; P_CIM = 's[28:29]'
P_LDT = 's[30:31]'; P_DSK = 's[32:33]'; P_WG = 's[36:37]'; P_WU = 's[38:39]'; P_WD = 's[40:41]'; P_OUT = 's[42:43]'; P_DBG = 's[44:45]'; P_WS = 's[46:47]'
S_NONCE = 's64'; S_LDT = 's65'; S_DSK = 's66'
S_HI = 's67'
SPIN_MAX = 1 << 18

def f2u(x):
    import struct
    return struct.unpack('<I', struct.pack('<f', x))[0]

class Gen:
    def __init__(self, opts):
        self.o = opts
        self.e = Emitter()
        self.nlab = 0
    def lab(self, base):
        self.nlab += 1
        return f'L_{base}_{self.nlab}'

    def prologue(self):
        e = self.e
        e('s_cmp_ge_u32 s2, 256')
        e('s_cbranch_scc1 L_end')
        e('s_load_dwordx16 s[16:31], s[0:1], 0')
        e('s_load_dwordx16 s[32:47], s[0:1], 64')
        e('v_lshrrev_b32 v2, 6, v0')
        e('v_and_b32 v1, 63, v0')
        e('v_readfirstlane_b32 s3, v2')
        e('s_and_b32 s4, s2, 7')
        e('s_lshr_b32 s5, s2, 3')
        e('s_lshl_b32 s6, s4, 5')
        e('s_add_u32 s6, s6, s5')
        e('s_mov_b32 s67, 0xffff0000')
        e('s_waitcnt lgkmcnt(0)')
        e('s_lshl_b32 s7, s6, 2')
        e(f's_load_dword s64, {P_WS}, {WS_E}')
        e(f's_load_dword s65, {P_LDT}, s7')
        e(f's_load_dword s66, {P_DSK}, s7')
        def srd(lo, plo, size):
            e(f's_mov_b32 s{lo}, s{plo}')
            e(f's_mov_b32 s{lo+1}, s{plo+1}')
            e(f's_mov_b32 s{lo+2}, {size}')
            e(f's_mov_b32 s{lo+3}, 0x20000')
        srd(8, 46, 0x10000000)
        srd(12, 36, 512 * 1792 * 2)
        srd(48, 38, 512 * 1792 * 2)
        srd(52, 40, 1792 * 512 * 2)
        srd(56, 16, 2048 * 512 * 2)
        srd(60, 42, 2048 * 512 * 2)

    def first_loads(self):
        e = self.e
        e('v_lshrrev_b32 v2, 5, v1')
        e('s_lshl_b32 s7, s2, 3')
        e('s_lshl_b32 s68, s3, 1')
        e('s_add_u32 s7, s7, s68')
        e('v_add_u32 v2, s7, v2')
        e('v_lshlrev_b32 v2, 10, v2')
        e('v_and_b32 v3, 31, v1')
        e('v_lshl_add_u32 v2, v3, 4, v2')
        e(f'global_load_dwordx4 v[8:11], v2, {P_X}')
        e(f'global_load_dwordx4 v[12:15], v2, {P_X} offset:512')
        e('s_lshr_b32 s68, s3, 1')
        e('s_lshl_b32 s7, s6, 1')
        e('s_add_u32 s7, s7, s68')
        e('s_lshl_b32 s7, s7, 8')
        e('s_and_b32 s68, s3, 1')
        e('s_lshl_b32 s68, s68, 7')
        e('s_add_u32 s7, s7, s68')
        e('v_lshl_add_u32 v3, v1, 1, s7')
        for r, P in zip(range(16, 22), (P_ARE, P_AIM, P_BRE, P_BIM, P_CRE, P_CIM)):
            e(f'global_load_ushort v{r}, v3, {P}')

    def rowreduce32(self, v, t):
        e = self.e
        e(f'v_add_f32_dpp {v}, {v}, {v} quad_perm:[1,0,3,2] row_mask:0xf bank_mask:0xf')
        e(f'v_add_f32_dpp {v}, {v}, {v} quad_perm:[2,3,0,1] row_mask:0xf bank_mask:0xf')
        e(f'v_add_f32_dpp {v}, {v}, {v} row_half_mirror row_mask:0xf bank_mask:0xf')
        e(f'v_add_f32_dpp {v}, {v}, {v} row_mirror row_mask:0xf bank_mask:0xf')
        e(f'v_mov_b32 {t}, {v}')
        e(f'v_permlane16_swap_b32 {v}, {t}')
        e(f'v_add_f32 {v}, {v}, {t}')

    def rbf(self, dst, src):
        e = self.e
        e(f'v_cvt_pk_bf16_f32 {dst}, {src}, {src}')
        e(f'v_and_b32 {dst}, {S_HI}, {dst}')

    def ln(self):
        e = self.e
        F = lambda i: f'v{24+i}'
        for i in range(8):
            e(f'v_lshlrev_b32 {F(2*i)}, 16, v{8+i}')
            e(f'v_and_b32 {F(2*i+1)}, {S_HI}, v{8+i}')
        e(f'v_add_f32 v40, {F(0)}, {F(1)}')
        e(f'v_add_f32 v41, {F(2)}, {F(3)}')
        e(f'v_add_f32 v42, {F(4)}, {F(5)}')
        e(f'v_add_f32 v43, {F(6)}, {F(7)}')
        for i in range(8, 16, 4):
            for j in range(4):
                e(f'v_add_f32 v{40+j}, v{40+j}, {F(i+j)}')
        e('v_add_f32 v40, v40, v41')
        e('v_add_f32 v42, v42, v43')
        e('v_add_f32 v40, v40, v42')
        self.rowreduce32('v40', 'v41')
        e(f'v_mul_f32 v40, {f2u(1/512):#x}, v40')
        for j in range(4):
            e(f'v_sub_f32 v{44+j}, {F(j)}, v40')
        for j in range(4):
            e(f'v_mul_f32 v{48+j}, v{44+j}, v{44+j}')
        for i in range(4, 16, 4):
            for j in range(4):
                e(f'v_sub_f32 v{44+j}, {F(i+j)}, v40')
            for j in range(4):
                e(f'v_fmac_f32 v{48+j}, v{44+j}, v{44+j}')
        e('v_add_f32 v48, v48, v49')
        e('v_add_f32 v50, v50, v51')
        e('v_add_f32 v48, v48, v50')
        self.rowreduce32('v48', 'v41')
        e(f'v_mul_f32 v48, {f2u(1/512):#x}, v48')
        self.rbf('v48', 'v48')
        e(f'v_add_f32 v48, {f2u(1e-5):#x}, v48')
        self.rbf('v48', 'v48')
        e('v_sqrt_f32 v48, v48')
        self.rbf('v48', 'v48')
        e('v_rcp_f32 v48, v48')
        self.rbf('v40', 'v40')
        for i in range(16):
            e(f'v_sub_f32 {F(i)}, {F(i)}, v40')
        for i in range(8):
            e(f'v_cvt_pk_bf16_f32 v{8+i}, {F(2*i)}, {F(2*i+1)}')
        for i in range(8):
            e(f'v_lshlrev_b32 {F(2*i)}, 16, v{8+i}')
            e(f'v_and_b32 {F(2*i+1)}, {S_HI}, v{8+i}')
        for i in range(16):
            e(f'v_mul_f32 {F(i)}, {F(i)}, v48')
        for i in range(8):
            e(f'v_cvt_pk_bf16_f32 v{8+i}, {F(2*i)}, {F(2*i+1)}')
        e('v_lshrrev_b32 v2, 5, v1')
        e('s_lshl_b32 s7, s3, 1')
        e('v_add_u32 v2, s7, v2')
        e(f'v_mul_u32_u24 v2, {LNS_ROW}, v2')
        e('v_and_b32 v3, 31, v1')
        e('v_lshl_add_u32 v2, v3, 4, v2')
        e(f'ds_write_b128 v2, v[8:11] offset:{L_LNS}')
        e(f'ds_write_b128 v2, v[12:15] offset:{L_LNS + 512}')
        e.waitlgkm0()
        e('s_barrier')
        e('v_and_b32 v2, 7, v0')
        e('v_lshrrev_b32 v3, 3, v0')
        e(f'v_mul_u32_u24 v4, {LNS_ROW}, v2')
        e('v_lshl_add_u32 v4, v3, 4, v4')
        e(f'ds_read_b128 v[8:11], v4 offset:{L_LNS}')
        e(f'ds_read_b128 v[12:15], v4 offset:{L_LNS + 512}')
        e('v_bfe_u32 v5, v1, 2, 2')
        e(f'v_mul_u32_u24 v5, {LNS_ROW}, v5')
        e('v_lshrrev_b32 v6, 4, v1')
        e('v_lshl_add_u32 v5, v6, 5, v5')
        e('v_and_b32 v6, 3, v1')
        e('v_lshl_add_u32 v5, v6, 3, v5')
        e('s_lshl_b32 s7, s3, 8')
        e('v_add_u32 v5, s7, v5')
        for i in range(2):
            for h in range(2):
                e(f'ds_read_b64_tr_b16 v[{24+4*i+2*h}:{25+4*i+2*h}], v5 offset:{L_LNS + 128*i + 4*LNS_ROW*h}')
        e('v_lshrrev_b32 v6, 1, v3')
        e('v_lshlrev_b32 v6, 10, v6')
        e('v_and_b32 v7, 1, v3')
        e('v_lshl_add_u32 v6, v7, 9, v6')
        e('v_lshl_add_u32 v6, v2, 4, v6')
        e('s_lshr_b32 s7, s2, 2')
        e('s_lshl_b32 s7, s7, 15')
        e('s_and_b32 s68, s2, 3')
        e('s_lshl_b32 s68, s68, 7')
        e('s_add_u32 s7, s7, s68')
        e(f's_add_u32 s7, s7, {WS_XNF}')
        e(f's_add_u32 s69, s7, 16384')
        e(f'buffer_store_dwordx4 v[8:11], v6, {SRD_WS}, s7 offen sc1')
        e(f'buffer_store_dwordx4 v[12:15], v6, {SRD_WS}, s69 offen sc1')
        e('v_lshlrev_b32 v7, 4, v1')
        e('s_lshl_b32 s7, s2, 13')
        e('s_lshl_b32 s68, s3, 11')
        e('s_add_u32 s7, s7, s68')
        e(f's_add_u32 s7, s7, {WS_XNT}')
        e(f'buffer_store_dwordx4 v[24:27], v7, {SRD_WS}, s7 offen sc1')
        e(f'buffer_store_dwordx4 v[28:31], v7, {SRD_WS}, s7 offen offset:1024 sc1', tag='lnst')

    def nonce(self):
        e = self.e
        e('s_waitcnt lgkmcnt(0)')
        e('s_mul_i32 s64, s64, 0x9e3779b1')
        e('s_add_u32 s64, s64, 0x7f4a7c15')

    def publish(self, off_sgpr, waittag=None):
        e = self.e
        if waittag: e.waitvm(waittag)
        e('s_barrier')
        e('v_cmp_eq_u32 vcc, 0, v0')
        e('v_mov_b32 v2, 0')
        e(f'v_mov_b32 v3, {S_NONCE}')
        e('s_and_saveexec_b64 s[70:71], vcc')
        e(f'buffer_store_dword v3, v2, {SRD_WS}, {off_sgpr} offen sc1')
        e('s_mov_b64 exec, s[70:71]')

    def poll(self, off_sgpr, nflags, vA='v2', vB='v3'):
        e = self.e
        L = self.lab('poll'); D = self.lab('polld')
        if nflags <= 64:
            e(f'v_min_u32 {vA}, {nflags - 1}, v1')
            e(f'v_lshlrev_b32 {vA}, 2, {vA}')
        else:
            e(f'v_lshlrev_b32 {vA}, 4, v1')
        e(f's_mov_b32 s72, {SPIN_MAX}')
        e.label(L)
        if nflags <= 64:
            e(f'buffer_load_dword {vB}, {vA}, {SRD_WS}, {off_sgpr} offen sc1')
            e('s_waitcnt vmcnt(0)')
            e(f'v_cmp_ne_u32 vcc, {S_NONCE}, {vB}')
        else:
            b = int(vB[1:])
            assert b % 2 == 0
            e(f'buffer_load_dwordx4 v[{b}:{b+3}], {vA}, {SRD_WS}, {off_sgpr} offen sc1')
            e('s_waitcnt vmcnt(0)')
            e(f'v_xor_b32 v{b}, {S_NONCE}, v{b}')
            e(f'v_xor_b32 v{b+1}, {S_NONCE}, v{b+1}')
            e(f'v_xor_b32 v{b+2}, {S_NONCE}, v{b+2}')
            e(f'v_xor_b32 v{b+3}, {S_NONCE}, v{b+3}')
            e(f'v_or_b32 v{b}, v{b}, v{b+1}')
            e(f'v_or3_b32 v{b}, v{b}, v{b+2}, v{b+3}')
            e(f'v_cmp_ne_u32 vcc, 0, v{b}')
        e('s_nop 4')
        e(f's_cbranch_vccz {D}')
        e('s_sleep 2')
        e('s_sub_u32 s72, s72, 1')
        e('s_cmp_lg_u32 s72, 0')
        e(f's_cbranch_scc1 {L}')
        e.label(D)

    def finish(self):
        e = self.e
        e.label('L_end')
        e('s_endpgm')

    def text(self, body):
        head = f"""; GENERATED by work/gen/gen.py -- S4 conv + GEGLU fused persistent kernel
; @launch grid=(256,1,1) block=(256,1,1) lds={LDS_BYTES}
.amdgcn_target "amdgcn-amd-amdhsa--gfx950"
.text
.globl {KN}
.p2align 8
.type {KN},@function
{KN}:
"""
        tail = f""".section .rodata,"a"
.p2align 6
.amdhsa_kernel {KN}
  .amdhsa_next_free_vgpr 512
  .amdhsa_next_free_sgpr 102
  .amdhsa_accum_offset 256
  .amdhsa_group_segment_fixed_size 0
  .amdhsa_kernarg_size 128
  .amdhsa_user_sgpr_count 2
  .amdhsa_user_sgpr_kernarg_segment_ptr 1
  .amdhsa_system_sgpr_workgroup_id_x 1
.end_amdhsa_kernel
"""
        return head + body + tail
```

```python
from phase_k import *

class CPhase:
    def conv_load_u(self):
        e = self.e
        e('s_and_b32 s69, s3, 1')
        e('s_lshl_b32 s7, s69, 20')
        e('s_lshr_b32 s68, s3, 1')
        e('s_lshl_b32 s73, s6, 1')
        e('s_add_u32 s73, s73, s68')
        e('s_lshl_b32 s74, s73, 4')
        e('s_add_u32 s7, s7, s74')
        e(f's_add_u32 s7, s7, {WS_XNT}')
        e('s_add_u32 s74, s7, 0x80000')
        e('v_lshlrev_b32 v2, 13, v1')
        e(f'buffer_load_dwordx4 v[8:11], v2, {SRD_WS}, s7 offen sc1')
        e(f'buffer_load_dwordx4 v[12:15], v2, {SRD_WS}, s74 offen sc1')

    def conv_store_u(self):
        e = self.e
        e('s_lshr_b32 s68, s3, 1')
        e('s_and_b32 s69, s3, 1')
        e(f's_mul_i32 s73, s68, {U_CH}')
        e('s_lshl_b32 s74, s69, 11')
        e('s_add_u32 s73, s73, s74')
        e('v_lshl_add_u32 v2, v1, 4, s73')
        e(f'ds_write_b128 v2, v[8:11] offset:{L_U + 512}')
        e(f'ds_write_b128 v2, v[12:15] offset:{L_U + 512 + 1024}')

    def conv_main(self, filler=None):
        e = self.e
        e('s_lshr_b32 s68, s3, 1')
        e('s_and_b32 s69, s3, 1')
        e('v_lshrrev_b32 v4, 4, v1')
        e('v_bfe_u32 v5, v1, 2, 2')
        e('v_and_b32 v6, 3, v1')
        e(f'v_mul_u32_u24 v2, {KC_STRIDE}, v5')
        e('v_lshl_add_u32 v2, v6, 3, v2')
        e('v_lshlrev_b32 v7, 4, v4')
        e('v_sub_u32 v2, v2, v7')
        e(f's_mul_i32 s73, s68, {KC_CH}')
        e('s_lshl_b32 s74, s69, 8')
        e('s_add_u32 s73, s73, s74')
        e('s_add_u32 s73, s73, 56')
        e('v_add_u32 v2, s73, v2')
        e('v_and_b32 v6, 15, v1')
        e('v_lshlrev_b32 v3, 5, v6')
        e('v_add_u32 v3, v3, v7')
        e(f's_mul_i32 s73, s68, {U_CH}')
        e(f's_add_u32 s73, s73, {L_U + 480 - 192}')
        e('s_sub_u32 s73, s73, s74')
        e('v_add_u32 v3, s73, v3')
        e.waitlgkm0()
        e('s_barrier')
        SETS = (64, 160)
        def loads(rr):
            b = SETS[rr & 1]; L = []
            for k in range(8):
                a = b + 4 * k
                L.append(f'ds_read_b64_tr_b16 v[{a}:{a+1}], v2 offset:{L_KC + 512*k + 64*rr + 8}')
                L.append(f'ds_read_b64_tr_b16 v[{a+2}:{a+3}], v2 offset:{L_KC + 512*k + 64*rr}')
                bb = b + 32 + 4 * k
                L.append(f'ds_read_b128 v[{bb}:{bb+3}], v3 offset:{512*k + 192 - 64*rr}')
            return L
        def mfmas(rr):
            b = SETS[rr & 1]; M = []
            pairs = sorted([(k, m) for k in range(8) for m in range(8) if k + m <= 7], key=lambda x: (max(x), x))
            for (k, m) in pairs:
                nb = k + m; acc = 128 + 4 * nb
                first = rr == 0 and (k, m) == [p for p in pairs if p[0] + p[1] == nb][0]
                c = '0' if first else f'v[{acc}:{acc+3}]'
                M.append(f'v_mfma_f32_16x16x32_bf16 v[{acc}:{acc+3}], v[{b+4*k}:{b+4*k+3}], v[{b+32+4*m}:{b+32+4*m+3}], {c}')
            return M
        e.ins(loads(0))
        for rr in range(4):
            M = mfmas(rr); L = loads(rr + 1) if rr < 3 else []
            li = 0
            for i, m in enumerate(M):
                e(m)
                want = (len(L) * (i + 1) + len(M) - 9) // (len(M) - 8) if L else 0
                while li < min(want, len(L)):
                    e(L[li]); li += 1
            while li < len(L):
                e(L[li]); li += 1

    def conv_exchange(self):
        e = self.e
        e('s_lshl_b32 s73, s3, 12')
        e('v_lshl_add_u32 v2, v1, 4, s73')
        e('s_xor_b32 s74, s3, 1')
        e('s_lshl_b32 s74, s74, 12')
        e('v_lshl_add_u32 v3, v1, 4, s74')
        e.waitlgkm0()
        e('s_nop 7')
        e('s_barrier')
        A = self.lab('xa'); D = self.lab('xd')
        e('s_and_b32 s69, s3, 1')
        e('s_cmp_eq_u32 s69, 0')
        e(f's_cbranch_scc0 {A}')
        for keep, send in ((128, 144), (144, 128)):
            for i in range(4):
                e(f'ds_write_b128 v2, v[{send+4*i}:{send+4*i+3}] offset:{L_KC + 1024*i}')
            e('s_waitcnt lgkmcnt(0)')
            e('s_barrier')
            for i in range(4):
                e(f'ds_read_b128 v[{80+4*i}:{83+4*i}], v3 offset:{L_KC + 1024*i}')
            e('s_waitcnt lgkmcnt(0)')
            for i in range(16):
                e(f'v_add_f32 v{64+i}, v{keep+i}, v{80+i}')
            if keep == 128:
                e(f's_branch {D}')
                e.label(A)
        e.label(D)

    def conv_epilogue(self):
        e = self.e
        e('s_lshr_b32 s68, s3, 1')
        e('s_and_b32 s69, s3, 1')
        e('s_lshl_b32 s73, s66, 16')
        e(f's_and_b32 s74, s66, {S_HI}')
        e('s_cmp_eq_u32 s68, 0')
        e('s_cselect_b32 s75, s73, s74')
        e('v_and_b32 v6, 15, v1')
        e('v_lshrrev_b32 v4, 4, v1')
        e('v_lshlrev_b32 v5, 5, v6')
        e('v_lshl_add_u32 v5, v4, 3, v5')
        e(f's_mul_i32 s73, s68, {U_CH}')
        e('s_lshl_b32 s74, s69, 11')
        e('s_add_u32 s73, s73, s74')
        e('v_add_u32 v2, s73, v5')
        for i in range(4):
            e(f'ds_read_b64 v[{80+2*i}:{81+2*i}], v2 offset:{L_U + 512 + 512*i}')
        e('s_lshl_b32 s73, s6, 1')
        e('s_add_u32 s73, s73, s68')
        e('s_lshl_b32 s73, s73, 12')
        e('s_add_u32 s73, s73, s74')
        e(f's_add_u32 s73, s73, {WS_YA}')
        for i in range(4):
            a = 64 + 4 * i; u = 80 + 2 * i; t = 96 + 8 * i
            e(f'v_cvt_pk_bf16_f32 v{t}, v{a}, v{a+1}')
            e(f'v_cvt_pk_bf16_f32 v{t+1}, v{a+2}, v{a+3}')
            e(f'v_lshlrev_b32 v{t+2}, 16, v{u}')
            e(f'v_and_b32 v{t+3}, {S_HI}, v{u}')
            e(f'v_lshlrev_b32 v{t+4}, 16, v{u+1}')
            e(f'v_and_b32 v{t+5}, {S_HI}, v{u+1}')
            for j in range(4):
                e(f'v_mul_f32 v{t+2+j}, s75, v{t+2+j}')
            e(f'v_cvt_pk_bf16_f32 v{t+6}, v{t+2}, v{t+3}')
            e(f'v_cvt_pk_bf16_f32 v{t+7}, v{t+4}, v{t+5}')
            e(f'v_lshlrev_b32 v{a}, 16, v{t}')
            e(f'v_and_b32 v{a+1}, {S_HI}, v{t}')
            e(f'v_lshlrev_b32 v{a+2}, 16, v{t+1}')
            e(f'v_and_b32 v{a+3}, {S_HI}, v{t+1}')
            e(f'v_lshlrev_b32 v{t+2}, 16, v{t+6}')
            e(f'v_and_b32 v{t+3}, {S_HI}, v{t+6}')
            e(f'v_lshlrev_b32 v{t+4}, 16, v{t+7}')
            e(f'v_and_b32 v{t+5}, {S_HI}, v{t+7}')
            for j in range(4):
                e(f'v_add_f32 v{a+j}, v{a+j}, v{t+2+j}')
            e(f'v_cvt_pk_bf16_f32 v{t}, v{a}, v{a+1}')
            e(f'v_cvt_pk_bf16_f32 v{t+1}, v{a+2}, v{a+3}')
            e(f'buffer_store_dwordx2 v[{t}:{t+1}], v5, {SRD_WS}, s73 offen offset:{512*i} sc1', tag='yast')
```

```python
from phase_c import *

S_RB = 's76'; S_FB = 's77'; S_WOFF = 's78'; S_M0 = 's79'; S_HOFF = 's80'
GC0 = -2.0 * 0.7978845608028654 * 1.4426950408889634
GC1 = GC0 * 0.044715

class G1Phase:
    def g1_setup(self):
        e = self.e
        e('s_min_u32 s7, s5, 27')
        e('s_lshr_b32 s68, s4, 1')
        e('s_lshl_b32 s68, s68, 2')
        e('s_and_b32 s69, s7, 3')
        e(f's_add_u32 {S_RB}, s68, s69')
        e('s_and_b32 s68, s4, 1')
        e('s_mul_i32 s68, s68, 7')
        e('s_lshr_b32 s69, s7, 2')
        e(f's_add_u32 {S_FB}, s68, s69')
        e(f's_lshl_b32 s68, {S_FB}, 8')
        e(f's_mul_i32 s69, s3, {32*3584}')
        e(f's_add_u32 {S_WOFF}, s68, s69')
        e(f's_lshl_b32 {S_M0}, s3, 12')
        e('v_lshrrev_b32 v2, 3, v1')
        e('v_mul_u32_u24 v2, 3584, v2')
        e('v_bfe_u32 v3, v1, 4, 1')
        e('v_lshlrev_b32 v3, 2, v3')
        e('v_and_b32 v4, 7, v1')
        e('v_xor_b32 v3, v3, v4')
        e('v_lshl_add_u32 v248, v3, 4, v2')

    def g1_dma(self, c):
        ps, kq = c >> 2, c & 3
        srd = SRD_WU if (ps & 1) else SRD_WG
        fh = ps >> 1
        slot = (c + 3) % 6
        L = []
        for i in range(4):
            L.append(f's_add_u32 s81, {S_WOFF}, {(128*kq + 8*i) * 3584 + 128*fh}')
            L.append(f's_add_u32 m0, {S_M0}, {L_RING + slot*16384 + i*1024}')
            L.append((f'buffer_load_dwordx4 v248, {srd}, s81 offen lds', f'w{c}'))
        return L

    def g1_bloads(self):
        e = self.e
        e(f's_lshl_b32 s7, {S_RB}, 2')
        e('s_add_u32 s7, s7, s3')
        e(f's_mul_i32 {S_HOFF}, s7, {112*1024}')
        e('s_lshl_b32 s7, s7, 15')
        e(f's_add_u32 s7, s7, {WS_XNF}')
        e('v_lshlrev_b32 v249, 4, v1')
        for ks in range(32):
            if ks and ks % 4 == 0: e('s_add_u32 s7, s7, 4096')
            e(f'buffer_load_dwordx4 a[{4*ks}:{4*ks+3}], v249, {SRD_WS}, s7 offen offset:{(ks%4)*1024} sc1')
        e(f's_lshl_b32 s7, {S_FB}, 13')
        e(f's_add_u32 {S_HOFF}, {S_HOFF}, s7')
        e(f's_add_u32 {S_HOFF}, {S_HOFF}, {WS_HFRAG}')

    def gelu_stream(self, fh):
        G0 = 64 + 64 * fh; U0 = G0 + 32
        L = []
        T = 216
        for ft in range(2):
            g = G0 + 16 * ft; u = U0 + 16 * ft
            for blk in range(0, 16, 4):
                R = range(blk, blk + 4)
                t = lambda j: T + (j & 3)
                if self.o.get('mimic'):
                    for j in range(blk, blk + 4, 2):
                        L.append(f'v_cvt_pk_bf16_f32 v{T+8}, v{g+j}, v{g+j+1}')
                        L.append(f'v_cvt_pk_bf16_f32 v{T+9}, v{u+j}, v{u+j+1}')
                        L.append(f'v_lshlrev_b32 v{g+j}, 16, v{T+8}')
                        L.append(f'v_and_b32 v{g+j+1}, {S_HI}, v{T+8}')
                        L.append(f'v_lshlrev_b32 v{u+j}, 16, v{T+9}')
                        L.append(f'v_and_b32 v{u+j+1}, {S_HI}, v{T+9}')
                for j in R: L.append(f'v_mul_f32 v{t(j)}, v{g+j}, v{g+j}')
                for j in R: L.append(f'v_fmamk_f32 v{t(j)}, v{t(j)}, {f2u(GC1):#x}, v250')
                for j in R: L.append(f'v_mul_f32 v{t(j)}, v{t(j)}, v{g+j}')
                for j in R: L.append(f'v_exp_f32 v{t(j)}, v{t(j)}')
                if not self.o.get('mimic'):
                    for j in R: L.append(f'v_mul_f32 v{u+j}, v{g+j}, v{u+j}')
                for j in R: L.append(f'v_add_f32 v{t(j)}, 1.0, v{t(j)}')
                for j in R: L.append(f'v_rcp_f32 v{t(j)}, v{t(j)}')
                if self.o.get('mimic'):
                    for j in R: L.append(f'v_mul_f32 v{t(j)}, v{g+j}, v{t(j)}')
                    for j in range(blk, blk + 4, 2):
                        L.append(f'v_cvt_pk_bf16_f32 v{T+8}, v{t(j)}, v{t(j+1)}')
                        L.append(f'v_lshlrev_b32 v{t(j)}, 16, v{T+8}')
                        L.append(f'v_and_b32 v{t(j+1)}, {S_HI}, v{T+8}')
                for j in R: L.append(f'v_mul_f32 v{u+j}, v{u+j}, v{t(j)}')
                for j in range(blk, blk + 4, 2):
                    L.append(f'v_cvt_pk_bf16_f32 v{g + (j >> 1)}, v{u+j}, v{u+j+1}')
                if blk in (4, 12):
                    b = blk >> 3
                    L.append((f'buffer_store_dwordx4 v[{g+4*b}:{g+4*b+3}], v249, {SRD_WS}, {S_HOFF} offen offset:{(2*ft+b)*1024} sc1', 'hst'))
        if fh == 0:
            L.append(f's_add_u32 {S_HOFF}, {S_HOFF}, 4096')
        return L

    def g1_main(self):
        e = self.e
        e('v_lshrrev_b32 v2, 5, v1')
        e('v_bfe_u32 v3, v1, 2, 2')
        e('v_lshl_add_u32 v4, v2, 3, v3')
        e('v_lshlrev_b32 v4, 7, v4')
        e('v_lshrrev_b32 v5, 1, v3')
        e('v_lshl_add_u32 v4, v5, 6, v4')
        e('v_bfe_u32 v5, v1, 4, 1')
        e('v_lshl_add_u32 v4, v5, 5, v4')
        e('v_and_b32 v5, 3, v1')
        e('v_lshl_add_u32 v4, v5, 3, v4')
        e(f'v_add_u32 v244, {L_RING}, v4')
        e('v_xor_b32 v245, 64, v244')
        e(f'v_add_u32 v246, {L_RING + 3*16384}, v4')
        e('v_xor_b32 v247, 64, v246')
        e(f'v_mov_b32 v250, {f2u(GC0):#x}')
        NST = 3
        def reads(gk):
            c = gk >> 3; kl = gk & 7; slot = (c + 3) % 6
            b = 192 + 8 * (gk % NST); L = []
            for ft in range(2):
                v = (244 if slot < 3 else 246) + ft
                off = (slot % 3) * 16384 + kl * 2048
                L.append(f'ds_read_b64_tr_b16 v[{b+4*ft}:{b+4*ft+1}], v{v} offset:{off}')
                L.append(f'ds_read_b64_tr_b16 v[{b+4*ft+2}:{b+4*ft+3}], v{v} offset:{off+512}')
            return L
        def sync(c):
            e.waitvm(f'w{c}')
            e('s_barrier')
            if c + 4 < 16: pend.extend(self.g1_dma(c + 4))
        pend = []
        e.waitlgkm0()
        sync(0)
        e.ins(reads(0)); e.ins(reads(1))
        filler = []
        for gk in range(128):
            ps = gk >> 5; ks = gk & 31
            nxt = gk + 2
            if nxt < 128:
                if nxt % 8 == 0: sync(nxt >> 3)
                R = reads(nxt)
            else: R = []
            acc = 64 + 32 * ps
            b = 192 + 8 * (gk % NST)
            for ft in range(2):
                a = acc + 16 * ft
                c = '0' if ks == 0 else f'v[{a}:{a+15}]'
                e(f'v_mfma_f32_32x32x16_bf16 v[{a}:{a+15}], v[{b+4*ft}:{b+4*ft+3}], a[{4*ks}:{4*ks+3}], {c}')
                e.ins(R[2*ft:2*ft+2])
                for _ in range(1 if len(pend) % 3 == 0 and False else 0): pass
                if pend:
                    e.ins(pend[:3]); del pend[:3]
                nf = self.o.get('nfill', 0)
                if filler and nf:
                    e.ins(filler[:nf]); del filler[:nf]
            if ks == 31:
                if ps & 1:
                    st = self.gelu_stream(ps >> 1)
                    if self.o.get('nfill', 0) and ps == 1:
                        filler = ['s_nop 0'] * 0 + st
                    else:
                        e.ins(filler); filler = []
                        e.ins(st)
        e.ins(filler)
```

```python
from phase_g1 import *

S_RB2 = 's82'; S_DB = 's83'; S_WDOFF = 's84'; S_WDM0 = 's85'; S_H0 = 's86'; S_H1 = 's87'
WDREG = 28672

class G2Phase:
    def g2_setup(self):
        e = self.e
        if self.o.get('g2map', 'A') == 'A':
            e('s_lshr_b32 s68, s4, 1'); e('s_lshl_b32 s68, s68, 3'); e('s_and_b32 s69, s5, 7'); e(f's_add_u32 {S_RB2}, s68, s69')
            e('s_and_b32 s68, s4, 1'); e('s_lshl_b32 s68, s68, 2'); e('s_lshr_b32 s69, s5, 3'); e(f's_add_u32 {S_DB}, s68, s69')
        else:
            e('s_lshl_b32 s68, s4, 2'); e('s_and_b32 s69, s5, 3'); e(f's_add_u32 {S_RB2}, s68, s69')
            e(f's_lshr_b32 {S_DB}, s5, 2')
        e(f's_mul_i32 s68, s3, {28*16*1024}')
        e(f's_lshl_b32 s69, {S_DB}, 7')
        e(f's_add_u32 {S_WDOFF}, s68, s69')
        e(f's_mul_i32 {S_WDM0}, s3, {WDREG}')
        e(f's_add_u32 {S_WDM0}, {S_WDM0}, {L_WD}')
        e('v_lshrrev_b32 v2, 3, v1')
        e('v_lshlrev_b32 v2, 10, v2')
        e('v_bfe_u32 v3, v1, 4, 1')
        e('v_lshlrev_b32 v3, 2, v3')
        e('v_and_b32 v4, 7, v1')
        e('v_xor_b32 v3, v3, v4')
        e('v_lshl_add_u32 v251, v3, 4, v2')

    def g2_dma(self, kl):
        L = []
        for j in range(2):
            L.append(f's_add_u32 s81, {S_WDOFF}, {(16*kl + 8*j) * 1024}')
            L.append(f's_add_u32 m0, {S_WDM0}, {(kl % 14) * 2048 + j * 1024}')
            L.append((f'buffer_load_dwordx4 v251, {SRD_WD}, s81 offen lds', f'd{kl}'))
        return L

    def g2_hloads(self):
        e = self.e
        e('s_lshr_b32 s68, s3, 1')
        e(f's_lshl_b32 s69, {S_RB2}, 1')
        e('s_add_u32 s73, s69, s68')
        e('s_xor_b32 s74, s73, 1')
        e('s_mul_i32 s75, s3, 28672')
        e(f's_add_u32 s75, s75, {WS_HFRAG}')
        e(f's_mul_i32 {S_H0}, s73, 114688'); e(f's_add_u32 {S_H0}, {S_H0}, s75')
        e(f's_mul_i32 {S_H1}, s74, 114688'); e(f's_add_u32 {S_H1}, {S_H1}, s75')
        e('v_lshlrev_b32 v249, 4, v1')
        for kl in range(28):
            if kl and kl % 4 == 0:
                e(f's_add_u32 {S_H0}, {S_H0}, 4096'); e(f's_add_u32 {S_H1}, {S_H1}, 4096')
            e(f'buffer_load_dwordx4 a[{8*kl}:{8*kl+3}], v249, {SRD_WS}, {S_H0} offen offset:{(kl%4)*1024} sc1')
            e(f'buffer_load_dwordx4 a[{8*kl+4}:{8*kl+7}], v249, {SRD_WS}, {S_H1} offen offset:{(kl%4)*1024} sc1')

    def g2_main(self):
        e = self.e
        e('v_lshrrev_b32 v2, 5, v1')
        e('v_bfe_u32 v3, v1, 2, 2')
        e('v_lshl_add_u32 v4, v2, 2, v3')
        e('v_lshlrev_b32 v4, 7, v4')
        e('v_lshrrev_b32 v5, 1, v3')
        e('s_and_b32 s68, s3, 1')
        e('v_xor_b32 v5, s68, v5')
        e('v_lshl_add_u32 v4, v5, 6, v4')
        e('v_bfe_u32 v5, v1, 4, 1')
        e('v_lshl_add_u32 v4, v5, 5, v4')
        e('v_and_b32 v5, 3, v1')
        e('v_lshl_add_u32 v4, v5, 3, v4')
        e(f'v_add_u32 v244, {S_WDM0}, v4')
        e('v_xor_b32 v245, 64, v244')
        NST = 3
        def reads(kl):
            b = 128 + 8 * (kl % NST); L = []
            for mi in range(2):
                off = (kl % 14) * 2048
                L.append(f'ds_read_b64_tr_b16 v[{b+4*mi}:{b+4*mi+1}], v{244+mi} offset:{off}')
                L.append(f'ds_read_b64_tr_b16 v[{b+4*mi+2}:{b+4*mi+3}], v{244+mi} offset:{off+1024}')
            return L
        for kl in range(2):
            e.waitvm(f'd{kl}'); e.ins(reads(kl))
        for kl in range(28):
            if kl + 2 < 28:
                e.waitvm(f'd{kl+2}')
                R = reads(kl + 2)
            else: R = []
            b = 128 + 8 * (kl % NST)
            n = 0
            for mi in range(2):
                for ni in range(2):
                    acc = 64 + 16 * (mi + 2 * ni)
                    c = '0' if kl == 0 else f'v[{acc}:{acc+15}]'
                    e(f'v_mfma_f32_32x32x16_bf16 v[{acc}:{acc+15}], v[{b+4*mi}:{b+4*mi+3}], a[{8*kl+4*ni}:{8*kl+4*ni+3}], {c}')
                    e.ins(R[n:n+1]); n += 1
            if kl + 14 < 28:
                e.ins(self.g2_dma(kl + 14))

    def g2_xy_loads(self):
        e = self.e
        e('s_and_b32 s68, s3, 1')
        e('s_lshr_b32 s69, s3, 1')
        e(f's_lshl_b32 s73, {S_RB2}, 6')
        e('s_lshl_b32 s74, s69, 5')
        e('s_add_u32 s73, s73, s74')
        e('s_lshl_b32 s74, s73, 10')
        e(f's_lshl_b32 s75, {S_DB}, 7')
        e('s_add_u32 s74, s74, s75')
        e('s_lshl_b32 s75, s68, 6')
        e('s_add_u32 s88, s74, s75')
        e('v_and_b32 v2, 31, v1')
        e('v_lshlrev_b32 v2, 10, v2')
        e('v_lshrrev_b32 v3, 5, v1')
        e('v_lshl_add_u32 v252, v3, 4, v2')
        e(f'buffer_load_dwordx4 v[160:163], v252, {SRD_X}, s88 offen')
        e(f'buffer_load_dwordx4 v[164:167], v252, {SRD_X}, s88 offen offset:32')
        e(f's_lshl_b32 s74, {S_DB}, 6')
        e('s_lshl_b32 s75, s68, 5')
        e('s_add_u32 s74, s74, s75')
        e('s_lshl_b32 s74, s74, 12')
        e('s_lshl_b32 s73, s73, 1')
        e('s_add_u32 s74, s74, s73')
        e(f's_add_u32 s89, s74, {WS_YA}')
        e('s_add_u32 s90, s89, 0x10000')
        e('v_lshrrev_b32 v2, 2, v1')
        e('v_lshlrev_b32 v2, 12, v2')
        e('v_and_b32 v3, 3, v1')
        e('v_lshl_add_u32 v253, v3, 4, v2')

    def g2_y_issue(self):
        e = self.e
        e(f'buffer_load_dwordx4 v[168:171], v253, {SRD_WS}, s89 offen sc1')
        e(f'buffer_load_dwordx4 v[172:175], v253, {SRD_WS}, s90 offen sc1')

    def g2_reduce(self):
        e = self.e
        e(f'v_lshl_add_u32 v2, v1, 4, {S_WDM0}')
        for s in range(1, 4):
            for j in range(4):
                r = 64 + 16 * s + 4 * j
                e(f'ds_write_b128 v2, v[{r}:{r+3}] offset:{s*4096 + j*1024}')
        e('s_lshl_b32 s73, s3, 11')
        e('v_lshl_add_u32 v6, v1, 4, s73')
        e(f'ds_write_b128 v6, v[168:171] offset:{L_KC}')
        e(f'ds_write_b128 v6, v[172:175] offset:{L_KC + 1024}')
        for s in range(1, 4):
            e(f's_xor_b32 s73, s3, {s}')
            e(f's_mul_i32 s73, s73, {WDREG}')
            e(f's_add_u32 s73, s73, {L_WD}')
            e(f'v_lshl_add_u32 v{2+s}, v1, 4, s73')
        e('v_lshrrev_b32 v7, 5, v1')
        e('v_bfe_u32 v8, v1, 2, 2')
        e('v_lshl_add_u32 v7, v7, 3, v8')
        e('v_lshlrev_b32 v7, 6, v7')
        e('v_bfe_u32 v8, v1, 4, 1')
        e('v_lshl_add_u32 v7, v8, 5, v7')
        e('v_and_b32 v8, 3, v1')
        e('v_lshl_add_u32 v7, v8, 3, v7')
        e('s_lshl_b32 s73, s3, 11')
        e('v_add_u32 v7, s73, v7')
        e.waitlgkm0()
        e('s_barrier')
        for pz in range(2):
            for h in range(2):
                e(f'ds_read_b64_tr_b16 v[{168+4*pz+2*h}:{169+4*pz+2*h}], v7 offset:{L_KC + 1024*pz + 256*h}')
        for s in range(1, 4):
            for j in range(4):
                r = 128 + 16 * (s - 1) + 4 * j if s < 3 else 176 + 4 * j
                e(f'ds_read_b128 v[{r}:{r+3}], v{2+s} offset:{s*4096 + j*1024}')
        for i in range(8):
            x = 160 + i; y = 168 + i
            e(f'v_lshlrev_b32 v8, 16, v{x}')
            e(f'v_and_b32 v9, {S_HI}, v{x}')
            e(f'v_lshlrev_b32 v10, 16, v{y}')
            e(f'v_and_b32 v11, {S_HI}, v{y}')
            e('v_add_f32 v8, v8, v10')
            e('v_add_f32 v9, v9, v11')
            e(f'v_cvt_pk_bf16_f32 v{x}, v8, v9')
        for i in range(16):
            e(f'v_add_f32 v{64+i}, v{64+i}, v{128+i}')
        for i in range(16):
            e(f'v_add_f32 v{144+i}, v{144+i}, v{176+i}')
        for i in range(16):
            e(f'v_add_f32 v{64+i}, v{64+i}, v{144+i}')
        for i in range(8):
            e(f'v_cvt_pk_bf16_f32 v{80+i}, v{64+2*i}, v{65+2*i}')
        e('v_permlane32_swap_b32 v80, v82')
        e('v_permlane32_swap_b32 v81, v83')
        e('v_permlane32_swap_b32 v84, v86')
        e('v_permlane32_swap_b32 v85, v87')
        for i in range(8):
            z = 80 + i; s = 160 + i
            e(f'v_lshlrev_b32 v8, 16, v{s}')
            e(f'v_and_b32 v9, {S_HI}, v{s}')
            e(f'v_lshlrev_b32 v10, 16, v{z}')
            e(f'v_and_b32 v11, {S_HI}, v{z}')
            e('v_add_f32 v8, v8, v10')
            e('v_add_f32 v9, v9, v11')
            e(f'v_cvt_pk_bf16_f32 v{96+i}, v8, v9')
        e(f'buffer_store_dwordx4 v[96:99], v252, {SRD_OUT}, s88 offen')
        e(f'buffer_store_dwordx4 v[100:103], v252, {SRD_OUT}, s88 offen offset:32')
```

```python
from gen import *
import math

def cmul(dst, x, y, t):
    p = lambda r: f'v[{r}:{r+1}]'
    return [f'v_pk_mul_f32 {p(t)}, {p(x)}, {p(y)} op_sel_hi:[1,0]',
            f'v_pk_fma_f32 {p(dst)}, {p(x)}, {p(y)}, {p(t)} op_sel:[1,1,0] op_sel_hi:[0,1,1] neg_lo:[0,1,0]']

def merge(*streams):
    out = []; idx = [0] * len(streams)
    while any(i < len(s) for i, s in zip(idx, streams)):
        for k, s in enumerate(streams):
            if idx[k] < len(s):
                out.append(s[idx[k]]); idx[k] += 1
    return out

class KPhase:
    def tables(self):
        e = self.e
        LOG2E = 1.4426950408889634
        e('s_lshr_b32 s68, s3, 1')
        e('s_lshl_b32 s69, s65, 16')
        e(f's_and_b32 s73, s65, {S_HI}')
        e('s_cmp_eq_u32 s68, 0')
        e('s_cselect_b32 s69, s69, s73')
        e(f'v_mov_b32 v22, {f2u(LOG2E):#x}')
        e('v_mul_f32 v23, s69, v22')
        e('v_exp_f32 v23, v23')
        self.rbf('v23', 'v23')
        for r in range(16, 22):
            e(f'v_lshlrev_b32 v{r}, 16, v{r}')
        e('v_mul_f32 v16, v23, v16')
        e('v_mul_f32 v17, v23, v17')
        e('v_mul_f32 v18, v23, v18')
        e('v_mul_f32 v19, v23, v19')
        e('v_mul_f32 v24, v20, v18')
        e('v_mul_f32 v25, v20, v19')
        e('v_fma_f32 v24, -v21, v19, v24')
        e('v_fmac_f32 v25, v21, v18')
        e('v_mul_f32 v16, v22, v16')
        e(f'v_mul_f32 v17, {f2u(1/(2*math.pi)):#x}, v17')
        def E(dst, mult, t):
            if mult == 1:
                e(f'v_exp_f32 v{t}, v16')
                e(f'v_rndne_f32 v{t+1}, v17')
                e(f'v_sub_f32 v{t+1}, v17, v{t+1}')
            else:
                e(f'v_mul_f32 v{t}, {float(mult)}, v16' if mult in (2, 4) else f'v_mul_f32 v{t}, {f2u(float(mult)):#x}, v16')
                e(f'v_mul_f32 v{t+1}, {f2u(float(mult)):#x}, v17')
                e(f'v_exp_f32 v{t}, v{t}')
                e(f'v_rndne_f32 v{t+2}, v{t+1}')
                e(f'v_sub_f32 v{t+1}, v{t+1}, v{t+2}')
            e(f'v_cos_f32 v{dst}, v{t+1}')
            e(f'v_sin_f32 v{dst+1}, v{t+1}')
            e(f'v_mul_f32 v{dst}, v{t}, v{dst}')
            e(f'v_mul_f32 v{dst+1}, v{t}, v{dst+1}')
        Z1, Z2, Z4, Z8, Z16, Z256 = 26, 28, 30, 32, 34, 36
        E(Z1, 1, 40); E(Z256, 256, 44)
        e.ins(cmul(Z2, Z1, Z1, 40)); e.ins(cmul(Z4, Z2, Z2, 40)); e.ins(cmul(Z8, Z4, Z4, 40)); e.ins(cmul(Z16, Z8, Z8, 40))
        e('s_lshr_b32 s68, s3, 1')
        e(f's_mul_i32 s68, s68, {T_CH}')
        e('s_and_b32 s69, s3, 1')
        e('s_lshl_b32 s69, s69, 8')
        e('s_add_u32 s68, s68, s69')
        e(f's_add_u32 s68, s68, {L_T}')
        e('v_lshl_add_u32 v38, v1, 2, s68')
        W = 24
        def ent(row, pair, tmp, neg=False):
            return [f'v_cvt_pk_bf16_f32 v{tmp}, v{pair}, {"-" if neg else ""}v{pair+1}',
                    f'ds_write_b32 v38, v{tmp} offset:{row*T_ROW}']
        A = []
        A += ['v_mov_b32 v60, 0x3f80', f'ds_write_b32 v38, v60 offset:0']
        A += ent(1, Z16, 61, True)
        A += cmul(48, Z16, Z16, 50) + ent(2, 48, 60, True)
        for j in range(3, 16):
            A += cmul(48, 48, Z16, 50) + ent(j, 48, 60 + (j & 1), True)
        B = []
        B += ent(16, W, 62)
        B += cmul(52, W, Z1, 54) + ent(17, 52, 63)
        for j in range(2, 16):
            B += cmul(52, 52, Z1, 54) + ent(16 + j, 52, 62 + (j & 1))
        C = []
        G = lambda h: 64 + 2 * h
        C += cmul(G(1), W, Z256, 56)
        for h in range(2, 8):
            C += cmul(G(h), G(h - 1), Z256, 56)
        base = {1: 32, 2: 41, 3: 46, 4: 51, 5: 54, 6: 57, 7: 60}
        step = {1: (Z2, 9), 2: (Z4, 5), 3: (Z4, 5), 4: (Z8, 3), 5: (Z8, 3), 6: (Z8, 3), 7: (Z8, 3)}
        D = []
        for h in range(1, 8):
            z, n = step[h]
            tgt = C if h in (1, 4) else D
            tr = 82 if tgt is C else 84
            tt = 56 if tgt is C else 58
            tgt += ent(base[h], G(h), tr)
            for j in range(1, n):
                tgt += cmul(G(h), G(h), z, tt) + ent(base[h] + j, G(h), tr + (j & 1))
        e.ins(merge(C[:14], A[:14]))
        e.ins(merge(A[14:], B, C[14:], D))

    def kmm(self):
        e = self.e
        e('s_lshr_b32 s68, s3, 1')
        e('s_and_b32 s69, s3, 1')
        e(f's_mul_i32 s73, s68, {KC_CH}')
        e(f's_mul_i32 s74, s68, {U_CH}')
        e(f's_add_u32 s74, s74, {L_U}')
        e('v_bfe_u32 v2, v1, 3, 2')
        e(f'v_mul_u32_u24 v2, {KC_STRIDE}, v2')
        e('v_and_b32 v3, 7, v1')
        e('v_lshl_add_u32 v2, v3, 3, v2')
        e('v_add_u32 v2, s73, v2')
        e('v_lshl_add_u32 v3, v1, 3, s74')
        e('s_cmp_eq_u32 s69, 0')
        e('s_cselect_b64 vcc, -1, 0')
        e('v_cndmask_b32 v2, v3, v2, vcc')
        e('v_mov_b32 v4, 0')
        e('v_mov_b32 v5, 0')
        e('v_and_b32 v6, 15, v1')
        e('v_lshrrev_b32 v7, 4, v1')
        lst = []
        for s, r in ((1, 8), (2, 9), (3, 10)):
            e(f'v_bfe_u32 v{r}, v6, {s}, 1')
            e(f'v_add_u32 v{r}, v6, v{r}')
            if (1 << (s - 1)) - 1: e(f'v_add_u32 v{r}, {(1 << (s-1)) - 1}, v{r}')
            e(f'v_lshrrev_b32 v{r}, {s}, v{r}')
        e('v_add_u32 v12, 16, v6')
        e('v_add_u32 v13, 32, v8')
        e('v_add_u32 v14, 41, v9')
        e('v_add_u32 v15, 46, v9')
        for tt in range(4):
            e(f'v_add_u32 v11, {51 + 3*tt}, v10')
            e(f'v_cndmask_b32 v{12+tt}, v11, v{12+tt}, vcc')
        e(f's_mul_i32 s73, s68, {T_CH}')
        e(f's_add_u32 s73, s73, {L_T}')
        e('v_lshl_add_u32 v11, v7, 4, s73')
        for tt in range(4):
            e(f'v_mad_u32_u24 v{12+tt}, v{12+tt}, {"s75"}, v11') if False else None
        e(f's_mov_b32 s75, {T_ROW}')
        for tt in range(4):
            e(f'v_mad_u32_u24 v{12+tt}, v{12+tt}, s75, v11')
        e('v_mad_u32_u24 v11, v6, s75, v11')
        e.waitlgkm0()
        e('s_barrier')
        e('ds_write_b64 v2, v[4:5]')
        for s in range(8):
            e(f'ds_read_b128 v[{64+4*s}:{67+4*s}], v11 offset:{64*s}')
        seq = [(s, tt) for s in range(8) for tt in range(4)]
        NB = 8
        def rd(i):
            s, tt = seq[i]; r = 96 + 4 * (i % NB)
            e(f'ds_read_b128 v[{r}:{r+3}], v{12+tt} offset:{64*s}')
        for i in range(NB - 2): rd(i)
        for i, (s, tt) in enumerate(seq):
            if i + NB - 2 < len(seq): rd(i + NB - 2)
            r = 96 + 4 * (i % NB); a = 128 + 4 * tt
            c = '0' if s == 0 else f'v[{a}:{a+3}]'
            e(f'v_mfma_f32_16x16x32_bf16 v[{a}:{a+3}], v[{r}:{r+3}], v[{64+4*s}:{67+4*s}], {c}')
        e(f's_mul_i32 s73, s68, {KC_CH}')
        e('s_lshl_b32 s74, s69, 11')
        e('s_add_u32 s73, s73, s74')
        e('v_lshlrev_b32 v2, 5, v6')
        e('v_lshl_add_u32 v2, v7, 3, v2')
        e('v_add_u32 v2, s73, v2')
        for tt in range(4):
            a = 128 + 4 * tt; t = 64 + 4 * tt
            e(f'v_cvt_pk_bf16_f32 v{t}, v{a}, v{a+1}')
            e(f'v_cvt_pk_bf16_f32 v{t+1}, v{a+2}, v{a+3}')
            e(f'v_cvt_pk_bf16_f32 v{t+2}, v{a+1}, v{a+2}')
            o = L_KC + 32 + 512 * tt
            e(f'ds_write_b64 v2, v[{t}:{t+1}] offset:{o}')
            o1 = o + KC_STRIDE
            e(f'ds_write_b16 v2, v{t} offset:{o1 + 2}')
            e(f'ds_write_b32 v2, v{t+2} offset:{o1 + 4}')
            e(f'ds_write_b16_d16_hi v2, v{t+1} offset:{o1 + 8}')
            o2 = o + 2 * KC_STRIDE
            e(f'ds_write_b32 v2, v{t} offset:{o2 + 4}')
            e(f'ds_write_b32 v2, v{t+1} offset:{o2 + 8}')
            o3 = o + 3 * KC_STRIDE
            e(f'ds_write_b16 v2, v{t} offset:{o3 + 6}')
            e(f'ds_write_b32 v2, v{t+2} offset:{o3 + 8}')
            e(f'ds_write_b16_d16_hi v2, v{t+1} offset:{o3 + 12}')

    def dump_lds(self, lds_off, nbytes, ws_off):
        e = self.e
        e.waitlgkm0(); e('s_barrier')
        e('v_lshlrev_b32 v2, 4, v0')
        e(f's_mul_i32 s7, s2, {nbytes}')
        e(f's_add_u32 s7, s7, {ws_off}')
        for o in range(0, nbytes, 4096):
            e(f'v_add_u32 v3, {o}, v2')
            e(f'v_cmp_gt_u32 vcc, {nbytes}, v3')
            e('s_and_saveexec_b64 s[70:71], vcc')
            e(f'ds_read_b128 v[4:7], v3 offset:{lds_off}')
            e(f'buffer_store_dwordx4 v[4:7], v3, {SRD_WS}, s7 offen')
            e('s_mov_b64 exec, s[70:71]')
        e('s_waitcnt vmcnt(0)')
```

```python
import sys
from phase_g2 import *
class G(Gen, KPhase, CPhase, G1Phase, G2Phase): pass
def build(opts, path):
    g = G(opts)
    e = g.e
    g.prologue(); g.first_loads(); g.g1_setup()
    for c in range(3): e.ins(g.g1_dma(c))
    g.g2_setup()
    g.ln(); g.nonce()
    e('s_lshl_b32 s7, s2, 2'); e(f's_add_u32 s7, s7, {WS_LNF}')
    g.publish('s7', 'lnst')
    g.tables(); g.kmm()
    e.waitlgkm0(); e('s_barrier')
    e.ins(g.g1_dma(3))
    e('s_cmp_ge_u32 s5, 28')
    e('s_cbranch_scc1 L_skipg1')
    e(f's_lshl_b32 s7, {S_RB}, 6'); e(f's_add_u32 s7, s7, {WS_LNF}')
    g.poll('s7', 16, 'v2', 'v3')
    g.g1_bloads()
    g.g1_main()
    e(f's_lshl_b32 s7, {S_RB}, 6'); e(f's_lshl_b32 s68, {S_FB}, 2'); e('s_add_u32 s7, s7, s68'); e(f's_add_u32 s7, s7, {WS_HF}')
    g.publish('s7', 'hst')
    e('s_branch L_joing1')
    e.label('L_skipg1')
    e.raw('  s_waitcnt vmcnt(0) lgkmcnt(0)')
    e.raw('  s_barrier')
    e.label('L_joing1')
    for kl in range(14): e.ins(g.g2_dma(kl))
    e(f's_mov_b32 s7, {WS_LNF}')
    g.poll('s7', 256, 'v2', 'v4')
    e('v_or_b32 v2, s2, v0')
    e('v_cmp_eq_u32 vcc, 0, v2')
    e('v_mov_b32 v2, 0')
    e(f'v_mov_b32 v3, {S_NONCE}')
    e('s_and_saveexec_b64 s[70:71], vcc')
    e(f'buffer_store_dword v3, v2, {SRD_WS}, 0 offen sc1')
    e('s_mov_b64 exec, s[70:71]')
    g.conv_load_u(); g.conv_store_u(); g.conv_main(); g.conv_exchange(); g.conv_epilogue()
    e('s_lshl_b32 s7, s6, 2'); e(f's_add_u32 s7, s7, {WS_YF}')
    g.publish('s7', 'yast')
    e(f's_lshr_b32 s7, {S_RB2}, 1'); e('s_lshl_b32 s7, s7, 6'); e(f's_add_u32 s7, s7, {WS_HF}')
    g.poll('s7', 14, 'v2', 'v3')
    g.g2_hloads()
    g.g2_xy_loads()
    g.g2_main()
    e(f's_lshl_b32 s7, {S_DB}, 7'); e(f's_add_u32 s7, s7, {WS_YF}')
    g.poll('s7', 32, 'v2', 'v3')
    g.g2_y_issue()
    g.g2_reduce()
    g.finish()
    body = e.finalize()
    open(path, 'w').write(g.text(body))
    print(path, e.stats)
if __name__ == '__main__':
    build({}, 'v1.s')
    build({'mimic': True}, 'v1m.s')
```
